```python
import torch

def _softmax(x, axis=-1):
    return torch.softmax(x, dim=axis)

def _gelu(x):
    return torch.nn.functional.gelu(x, approximate='tanh')

def _silu(x):
    return torch.nn.functional.silu(x)

def _sigmoid(x):
    return torch.sigmoid(x)

def _layernorm(x, axis=-1, eps=1e-05):
    m = x.mean(dim=axis, keepdim=True)
    v = x.var(dim=axis, keepdim=True, unbiased=False)
    return (x - m) / torch.sqrt(v + eps)

def _scatter_add(tgt, idx, src, axis=0):
    return tgt.clone().index_add_(axis, idx, src)

def _segment_sum(src, seg, n):
    out = torch.zeros((n,) + src.shape[1:], dtype=src.dtype)
    return out.index_add_(0, seg, src)

def _pad(x, pw):
    flat = tuple((v for pair in reversed(pw) for v in pair))
    return torch.nn.functional.pad(x, flat)
kernel_name = 'standalone__tree_speculative_verify_tree_attention_over_candidate_token_tree__decode'

def setup_inputs():

    _w = lambda a: (lambda t: t.to(torch.bfloat16) if t.is_floating_point() else t)(torch.as_tensor(a))
    B, Hq, Hkv, T, C, D = (1, 32, 32, 1, 8192, 128)
    tree_mask = torch.zeros((B, T, T), dtype=float)
    for b in range(B):
        parent = torch.zeros(T, dtype=torch.int64)
        for i in range(1, T):
            parent[i] = int(torch.randint(0, i, (1,)).item())
        for i in range(T):
            j = i
            tree_mask[b, i, j] = 1.0
            while j > 0:
                j = parent[j]
                tree_mask[b, i, j] = 1.0
    return {'q': _w((lambda *s: torch.randn(*s, dtype=torch.bfloat16) * 0.8)(B, Hq, T, D)), 'k_cache': _w((lambda *s: torch.randn(*s, dtype=torch.bfloat16) * 0.8)(B, Hkv, C, D)), 'v_cache': _w((lambda *s: torch.randn(*s, dtype=torch.bfloat16) * 0.05)(B, Hkv, C, D)), 'k_tree': _w((lambda *s: torch.randn(*s, dtype=torch.bfloat16) * 0.8)(B, Hkv, T, D)), 'v_tree': _w((lambda *s: torch.randn(*s, dtype=torch.bfloat16) * 0.05)(B, Hkv, T, D)), 'tree_mask': _w(tree_mask)}

def reference(q, k_cache, v_cache, k_tree, v_tree, tree_mask):
    B, Hq, T, D = q.shape
    Hkv, C = (k_cache.shape[1], k_cache.shape[2])
    rep = Hq // Hkv
    kc = (lambda x, n, axis: torch.repeat_interleave(x, n, dim=axis))(k_cache, rep, axis=1)
    vc = (lambda x, n, axis: torch.repeat_interleave(x, n, dim=axis))(v_cache, rep, axis=1)
    kt = (lambda x, n, axis: torch.repeat_interleave(x, n, dim=axis))(k_tree, rep, axis=1)
    vt = (lambda x, n, axis: torch.repeat_interleave(x, n, dim=axis))(v_tree, rep, axis=1)
    k = torch.concatenate([kc, kt], axis=2)
    v = torch.concatenate([vc, vt], axis=2)
    scale = D ** (-0.5)
    scores = torch.einsum('bhqd,bhkd->bhqk', q, k) * scale
    ctx_mask = torch.ones((B, 1, T, C), dtype=scores.dtype)
    tm = tree_mask[:, None, :, :].clone()
    full_mask = torch.concatenate([ctx_mask, tm], axis=-1)
    scores = scores + (1.0 - full_mask) * -1000000000.0
    p = _softmax(scores, axis=-1)
    return torch.einsum('bhqk,bhkd->bhqd', p, v)
```

```python
import struct, sys, math

NAME = "standalone__tree_speculative_verify_tree_attention_over_candidate_token_tree__decode"

def f2u(x):
    return struct.unpack("<I", struct.pack("<f", x))[0]

HEADER = """; Kernarg layout for this problem (72 bytes, ptrs only, base s[0:1]):
"""

def gen(ldflag="nt"):
    o = []
    def e(s):
        o.append("    " + s)
    def lab(s):
        o.append(s + ":")
    C = f2u((1.0 / math.sqrt(128.0)) * math.log2(math.e))
    SCALE = f2u(1.0 / math.sqrt(128.0))
    LOG2E = f2u(math.log2(math.e))
    NEG1E9 = f2u(-1.0e9)
    vQ = 6
    vT = 10
    vVT = 26
    vK = 28
    vV = 92
    vKT = 124
    def K(n): return vK + 4 * n
    def V(n): return (vV + 4 * n) if n < 8 else K(n - 8)
    def r4(b): return f"v[{b}:{b+3}]"
    def r2(b): return f"v[{b}:{b+1}]"

    o.append(HEADER + "; @launch grid=(256,1,1) block=(1024,1,1) lds=8448")
    o.append('.amdgcn_target "amdgcn-amd-amdhsa--gfx950"')
    o.append(".text")
    o.append(f".globl {NAME}_kernel")
    o.append(".p2align 8")
    o.append(f".type {NAME}_kernel,@function")
    lab(f"{NAME}_kernel")
    e("s_cmp_ge_u32 s2, 256")
    e("s_cbranch_scc1 L_end")
    e("s_load_dwordx16 s[4:19], s[0:1], 0")
    e("s_load_dwordx2 s[20:21], s[0:1], 64")
    e("v_and_b32 v1, 63, v0                 ; lane")
    e("v_lshrrev_b32 v2, 6, v0")
    e("v_and_b32 v3, 15, v0                 ; j")
    e("v_readfirstlane_b32 s22, v2")
    e("v_lshlrev_b32 v4, 4, v1")
    e("v_lshl_add_u32 v4, v2, 14, v4")
    e("s_lshl_b32 s32, s2, 18               ; wg*256KiB")
    e("s_add_u32 s33, s32, 4096")
    e("s_add_u32 s34, s32, 8192")
    e("s_add_u32 s35, s32, 12288")
    e("s_lshr_b32 s3, s2, 3                 ; head")
    e("s_lshl_b32 s36, s3, 8                ; head*256")
    e("v_lshlrev_b32 v5, 4, v3")
    e("v_add_u32 v5, s36, v5")
    e("s_and_b32 s37, s2, 7                 ; split")
    e("s_or_b32 s37, s37, s22")
    e("v_bfe_u32 v2, v0, 4, 1               ; g&1")
    e("v_lshl_add_u32 v2, v2, 3, v5")
    e("v_mov_b32 v0, 0")
    e("s_mov_b32 s26, 0x4000000")
    e("s_mov_b32 s27, 0x00020000")
    e("s_mov_b32 s30, 0x4000000")
    e("s_mov_b32 s31, 0x00020000")
    e("s_waitcnt lgkmcnt(0)")
    e("s_mov_b32 s24, s6")
    e("s_mov_b32 s25, s7")
    e("s_mov_b32 s28, s8")
    e("s_mov_b32 s29, s9")
    e("s_cmp_lg_u32 s37, 0")
    e("s_cbranch_scc1 L_notree0")
    e(f"global_load_dwordx4 {r4(vKT)}, v5, s[10:11]")
    e(f"global_load_dwordx2 {r2(vVT)}, v2, s[12:13]")
    e("global_load_ushort v2, v0, s[14:15]")
    lab("L_notree0")
    e(f"global_load_dwordx4 {r4(vQ)}, v5, s[4:5]")
    def ld(dst, srd, n):
        e(f"buffer_load_dwordx4 {r4(dst)}, v4, s[{srd}:{srd+3}], s{32 + n // 4} offen offset:{(n % 4) * 1024} {ldflag}")
    for n in range(16):
        ld(K(n), 24, n)
    for n in range(8):
        ld(V(n), 28, n)
    for n in range(16):
        cnt = 23 if n <= 8 else 23 - (n - 8)
        e(f"s_waitcnt vmcnt({cnt})")
        e(f"v_dot2_f32_bf16 v{vT+n}, v{K(n)}, v{vQ}, 0")
        for r in range(1, 4):
            e(f"v_dot2_f32_bf16 v{vT+n}, v{K(n)+r}, v{vQ+r}, v{vT+n}")
        if n < 8:
            ld(V(8 + n), 28, 8 + n)
    vM = 60
    vA0 = 64
    vA1 = 68
    vAcc = 72
    vY = 76
    vMx = 77
    vP = 78
    vL = 79
    vPB = 80
    vYT = 81
    vtmp = 82
    vtmp2 = 83
    vPT = 84
    e("s_cmp_lg_u32 s37, 0")
    e("s_cbranch_scc1 L_notree1")
    e(f"v_dot2_f32_bf16 v{vYT}, v{vKT}, v{vQ}, 0")
    for r in range(1, 4):
        e(f"v_dot2_f32_bf16 v{vYT}, v{vKT+r}, v{vQ+r}, v{vYT}")
    e("v_lshlrev_b32 v2, 16, v2")
    e("v_sub_f32 v2, 1.0, v2")
    e(f"v_mul_f32 v2, 0x{NEG1E9:08x}, v2")
    e("s_nop 1")
    for sh in (8, 4, 2, 1):
        e(f"v_add_f32_dpp v{vYT}, v{vYT}, v{vYT} row_ror:{sh} row_mask:0xf bank_mask:0xf")
        e("s_nop 1")
    e(f"v_mov_b32 v{vtmp}, 0x{SCALE:08x}")
    e(f"v_fma_f32 v{vYT}, v{vYT}, v{vtmp}, v2")
    e(f"v_mul_f32 v{vYT}, 0x{LOG2E:08x}, v{vYT}")
    e("s_branch L_tree1done")
    lab("L_notree1")
    e(f"v_mov_b32 v{vYT}, 0xff800000")
    e(f"v_mov_b32 v{vVT}, 0")
    e(f"v_mov_b32 v{vVT+1}, 0")
    lab("L_tree1done")
    e(f"v_and_b32 v{vtmp}, 1, v3")
    e(f"v_lshlrev_b32 v{vtmp}, 4, v{vtmp}")
    e(f"v_mov_b32 v{vtmp2}, 0xffff")
    e(f"v_lshlrev_b32 v{vtmp}, v{vtmp}, v{vtmp2}")
    e(f"v_lshrrev_b32 v{vtmp2}, 1, v3")
    for r in range(4):
        e(f"v_cmp_eq_u32 vcc, {r}, v{vtmp2}")
        e("s_nop 1")
        e(f"v_cndmask_b32 v{vM+r}, 0, v{vtmp}, vcc")
    e("s_mov_b32 s40, 0xcccccccc")
    e("s_mov_b32 s41, 0xcccccccc")
    e("s_mov_b32 s42, 0xaaaaaaaa")
    e("s_mov_b32 s43, 0xaaaaaaaa")
    T = lambda n: vT + n
    for n in range(8):
        e(f"v_add_f32_dpp v{T(n)}, v{T(n)}, v{T(n)} row_ror:8 row_mask:0xf bank_mask:0x3")
    for n in range(8):
        e(f"v_add_f32_dpp v{T(n)}, v{T(n+8)}, v{T(n+8)} row_ror:8 row_mask:0xf bank_mask:0xc")
    e("s_nop 1")
    for n in range(4):
        e(f"v_add_f32_dpp v{T(n)}, v{T(n)}, v{T(n)} row_half_mirror row_mask:0xf bank_mask:0x5")
    for n in range(4):
        e(f"v_add_f32_dpp v{T(n)}, v{T(n+4)}, v{T(n+4)} row_half_mirror row_mask:0xf bank_mask:0xa")
    e("s_nop 1")
    for n in range(4):
        e(f"v_add_f32_dpp v{T(n)}, v{T(n)}, v{T(n)} quad_perm:[2,3,0,1] row_mask:0xf bank_mask:0xf")
    e(f"v_cndmask_b32 v{T(0)}, v{T(0)}, v{T(2)}, s[40:41]")
    e(f"v_cndmask_b32 v{T(1)}, v{T(1)}, v{T(3)}, s[40:41]")
    e("s_nop 1")
    for n in range(2):
        e(f"v_add_f32_dpp v{T(n)}, v{T(n)}, v{T(n)} quad_perm:[1,0,3,2] row_mask:0xf bank_mask:0xf")
    e(f"v_cndmask_b32 v{T(0)}, v{T(0)}, v{T(1)}, s[42:43]")
    e(f"v_mul_f32 v{vY}, 0x{C:08x}, v{T(0)}")
    e(f"v_max_f32 v{vMx}, v{vY}, v{vYT}")
    e("s_nop 1")
    for sh in (8, 4, 2, 1):
        e(f"v_max_f32_dpp v{vMx}, v{vMx}, v{vMx} row_ror:{sh} row_mask:0xf bank_mask:0xf")
        e("s_nop 1")
    e(f"v_mov_b32 v{vtmp}, v{vMx}")
    e("s_nop 1")
    e(f"v_permlane32_swap_b32 v{vMx}, v{vtmp}")
    e(f"v_max_f32 v{vMx}, v{vMx}, v{vtmp}")
    e(f"v_mov_b32 v{vtmp}, v{vMx}")
    e("s_nop 1")
    e(f"v_permlane16_swap_b32 v{vMx}, v{vtmp}")
    e(f"v_max_f32 v{vMx}, v{vMx}, v{vtmp}")
    e(f"v_sub_f32 v{vP}, v{vY}, v{vMx}")
    e(f"v_sub_f32 v{vPT}, v{vYT}, v{vMx}")
    e(f"v_exp_f32 v{vP}, v{vP}")
    e(f"v_exp_f32 v{vPT}, v{vPT}")
    e("s_nop 0")
    e(f"v_cvt_pk_bf16_f32 v{vPB}, v{vP}, v{vP}")
    e(f"v_lshlrev_b32 v{vAcc}, 16, v{vVT}")
    e(f"v_and_b32 v{vAcc+1}, 0xffff0000, v{vVT}")
    e(f"v_lshlrev_b32 v{vAcc+2}, 16, v{vVT+1}")
    e(f"v_and_b32 v{vAcc+3}, 0xffff0000, v{vVT+1}")
    for r in range(4):
        e(f"v_mul_f32 v{vAcc+r}, v{vPT}, v{vAcc+r}")
    e(f"v_mov_b32 v{vL}, v{vP}")
    e("s_nop 1")
    for sh in (8, 4, 2, 1):
        e(f"v_add_f32_dpp v{vL}, v{vL}, v{vL} row_ror:{sh} row_mask:0xf bank_mask:0xf")
        e("s_nop 1")
    e(f"v_mov_b32 v{vtmp}, v{vL}")
    e("s_nop 1")
    e(f"v_permlane32_swap_b32 v{vL}, v{vtmp}")
    e(f"v_add_f32 v{vL}, v{vL}, v{vtmp}")
    e(f"v_mov_b32 v{vtmp}, v{vL}")
    e("s_nop 1")
    e(f"v_permlane16_swap_b32 v{vL}, v{vtmp}")
    e(f"v_add_f32 v{vL}, v{vL}, v{vtmp}")
    e(f"v_add_f32 v{vL}, v{vL}, v{vPT}")
    e(f"v_lshrrev_b32 v{vtmp}, 4, v1")
    e(f"v_lshlrev_b32 v{vtmp}, 4, v{vtmp}")
    e(f"v_lshl_add_u32 v{vtmp}, v3, 5, v{vtmp}")
    e("s_lshl_b32 s38, s22, 9")
    e(f"v_add_u32 v{vtmp}, s38, v{vtmp}")
    e("s_lshl_b32 s38, s22, 3")
    e("s_add_u32 s38, s38, 8192")
    e(f"v_mov_b32 v{vtmp2}, s38")
    e(f"v_mov_b32 v86, v{vMx}")
    e(f"v_mov_b32 v87, v{vL}")
    for n in range(16):
        A = vA0 if n % 2 == 0 else vA1
        for r in range(4):
            e(f"v_and_b32_dpp v{A+r}, v{vPB}, v{vM+r} row_newbcast:{n} row_mask:0xf bank_mask:0xf")
        e(f"s_waitcnt vmcnt({15-n})")
        e("s_nop 0")
        e(f"v_mfma_f32_16x16x32_bf16 {r4(vAcc)}, {r4(A)}, {r4(V(n))}, {r4(vAcc)}")
    e("s_nop 7")
    e("s_mov_b32 exec_hi, 0")
    e(f"ds_write_b128 v{vtmp}, {r4(vAcc)}")
    e(f"ds_write_b64 v{vtmp2}, v[86:87]")
    e("s_mov_b64 exec, -1")
    e("s_waitcnt lgkmcnt(0)")
    e("s_barrier")
    e("s_cmp_lg_u32 s22, 0")
    e("s_cbranch_scc1 L_end")
    vO = 28
    e("v_lshlrev_b32 v4, 3, v1              ; lane*8")
    e("v_lshlrev_b32 v5, 3, v3              ; j*8")
    e("ds_read_b64 v[60:61], v5 offset:8192")
    for w in range(16):
        e(f"ds_read_b64 {r2(vO+2*w)}, v4 offset:{w*512}")
    e("s_waitcnt lgkmcnt(15)")
    e("v_mov_b32 v62, v60")
    e("s_nop 1")
    for sh in (8, 4, 2, 1):
        e(f"v_max_f32_dpp v62, v62, v62 row_ror:{sh} row_mask:0xf bank_mask:0xf")
        e("s_nop 1")
    e("v_sub_f32 v63, v60, v62")
    e("v_exp_f32 v63, v63                   ; f_w")
    e("s_nop 0")
    e("v_mul_f32 v64, v63, v61")
    e("s_nop 1")
    for sh in (8, 4, 2, 1):
        e(f"v_add_f32_dpp v64, v64, v64 row_ror:{sh} row_mask:0xf bank_mask:0xf")
        e("s_nop 1")
    e("v_mov_b32 v68, 0")
    e("v_mov_b32 v69, 0")
    e("v_mov_b32 v70, v62")
    e("v_mov_b32 v71, v64")
    e("s_waitcnt lgkmcnt(0)")
    for w in range(16):
        e(f"v_fmac_f32_dpp v68, v63, v{vO+2*w} row_newbcast:{w} row_mask:0xf bank_mask:0xf")
        e(f"v_fmac_f32_dpp v69, v63, v{vO+2*w+1} row_newbcast:{w} row_mask:0xf bank_mask:0xf")
    e("v_lshlrev_b32 v4, 4, v1              ; lane*16")
    e("s_lshl_b32 s38, s2, 10")
    e("v_add_u32 v5, s38, v4")
    e("global_store_dwordx4 v5, v[68:71], s[20:21] sc1")
    e("s_lshl_b32 s39, s3, 2                ; head*4")
    e("v_mov_b32 v6, s39")
    e("v_mov_b32 v7, 1")
    e("s_waitcnt vmcnt(0)")
    e("s_mov_b64 exec, 1")
    e("global_atomic_add v8, v6, v7, s[18:19] sc0")
    e("s_waitcnt vmcnt(0)")
    e("v_readfirstlane_b32 s38, v8")
    e("s_mov_b64 exec, -1")
    e("s_cmp_lg_u32 s38, 7")
    e("s_cbranch_scc1 L_end")
    e("s_lshl_b32 s38, s3, 13               ; head*8*1024")
    e("v_add_u32 v5, s38, v4")
    e("v_add_u32 v6, 4096, v5")
    for s in range(8):
        e(f"global_load_dwordx4 {r4(28+4*s)}, v{5 if s < 4 else 6}, s[20:21] offset:{(s%4)*1024} sc1")
    e("s_lshl_b32 s38, s3, 8")
    e("v_lshlrev_b32 v7, 2, v1")
    e("v_add_u32 v7, s38, v7")
    e("s_waitcnt vmcnt(0)")
    Ms = [28 + 4 * s + 2 for s in range(8)]
    e(f"v_max3_f32 v60, v{Ms[0]}, v{Ms[1]}, v{Ms[2]}")
    e(f"v_max3_f32 v60, v60, v{Ms[3]}, v{Ms[4]}")
    e(f"v_max3_f32 v60, v60, v{Ms[5]}, v{Ms[6]}")
    e(f"v_max_f32 v60, v60, v{Ms[7]}")
    for s in range(8):
        e(f"v_sub_f32 v{Ms[s]}, v{Ms[s]}, v60")
    for s in range(8):
        e(f"v_exp_f32 v{Ms[s]}, v{Ms[s]}")
    e("s_nop 0")
    e(f"v_mul_f32 v61, v{Ms[0]}, v{28}")
    e(f"v_mul_f32 v62, v{Ms[0]}, v{29}")
    e(f"v_mul_f32 v63, v{Ms[0]}, v{31}")
    for s in range(1, 8):
        e(f"v_fmac_f32 v61, v{Ms[s]}, v{28+4*s}")
        e(f"v_fmac_f32 v62, v{Ms[s]}, v{28+4*s+1}")
        e(f"v_fmac_f32 v63, v{Ms[s]}, v{28+4*s+3}")
    e("v_rcp_f32 v63, v63")
    e("s_nop 0")
    e("v_mul_f32 v61, v61, v63")
    e("v_mul_f32 v62, v62, v63")
    e("v_cvt_pk_bf16_f32 v61, v61, v62")
    e("global_store_dword v7, v61, s[16:17]")
    lab("L_end")
    e("s_endpgm")
    o.append('.section .rodata,"a"')
    o.append(".p2align 6")
    o.append(f".amdhsa_kernel {NAME}_kernel")
    o.append("  .amdhsa_next_free_vgpr 128")
    o.append("  .amdhsa_next_free_sgpr 48")
    o.append("  .amdhsa_accum_offset 128")
    o.append("  .amdhsa_group_segment_fixed_size 0")
    o.append("  .amdhsa_kernarg_size 72")
    o.append("  .amdhsa_user_sgpr_count 2")
    o.append("  .amdhsa_user_sgpr_kernarg_segment_ptr 1")
    o.append("  .amdhsa_system_sgpr_workgroup_id_x 1")
    o.append(".end_amdhsa_kernel")
    return "\n".join(o) + "\n"

if __name__ == "__main__":
    out = sys.argv[1]
    flag = sys.argv[2] if len(sys.argv) > 2 else "nt"
    open(out, "w").write(gen(flag if flag != "none" else ""))
```

```python
import struct, sys, math

NAME = "standalone__tree_speculative_verify_tree_attention_over_candidate_token_tree__decode"

def f2u(x):
    return struct.unpack("<I", struct.pack("<f", x))[0]

HEADER = """; Kernarg layout for this problem (72 bytes, ptrs only, base s[0:1]):
"""

def gen(ldflag="nt", stamps=False):
    o = []
    nst = [0]
    def stamp(i):
        if stamps:
            o.append(f"    s_memrealtime s[{48+2*i}:{49+2*i}]")
            o.append("    s_waitcnt lgkmcnt(0)")
    def dump_stamps(n, lbl):
        if stamps == "dbg":
            o.append("    s_mov_b64 exec, 1")
            o.append("    v_mov_b32 v10, 0")
            o.append("    s_not_b32 s46, s48")
            o.append("    v_mov_b32 v12, s46")
            o.append("    global_atomic_umax v10, v12, s[18:19]")
            for i in range(0, n):
                o.append(f"    v_mov_b32 v{13+i}, s{48+2*i}")
                o.append(f"    global_atomic_umax v10, v{13+i}, s[18:19] offset:{4*(i+1)}")
            for i in (1,2,4,5):
                o.append(f"    s_not_b32 s46, s{48+2*i}")
                o.append(f"    v_mov_b32 v{30+i}, s46")
                o.append(f"    global_atomic_umax v10, v{30+i}, s[18:19] offset:{4*(10+(1,2,4,5).index(i))}")
        elif stamps:
            o.append("    s_mov_b64 exec, 1")
            o.append("    s_lshl_b32 s46, s2, 4")
            o.append("    s_add_u32 s46, s46, s22")
            o.append("    s_lshl_b32 s46, s46, 7")
            o.append("    s_add_u32 s46, s46, 0x100000")
            o.append("    v_mov_b32 v10, s46")
            for i in range(n):
                o.append(f"    v_mov_b32 v12, s{48+2*i}")
                o.append(f"    v_mov_b32 v13, s{49+2*i}")
                o.append(f"    global_store_dwordx2 v10, v[12:13], s[20:21] offset:{8*i}")
                o.append("    s_nop 1")
    def e(s):
        o.append("    " + s)
    def lab(s):
        o.append(s + ":")
    C = f2u((1.0 / math.sqrt(128.0)) * math.log2(math.e))
    SCALE = f2u(1.0 / math.sqrt(128.0))
    LOG2E = f2u(math.log2(math.e))
    NEG1E9 = f2u(-1.0e9)
    vQ = 6
    vT = 10
    vVT = 26
    vK = 28
    vV = 92
    vKT = 124
    def K(n): return vK + 4 * n
    def V(n): return (vV + 4 * n) if n < 8 else K(n - 8)
    def r4(b): return f"v[{b}:{b+3}]"
    def r2(b): return f"v[{b}:{b+1}]"

    o.append(HEADER + "; @launch grid=(256,1,1) block=(1024,1,1) lds=8448")
    o.append('.amdgcn_target "amdgcn-amd-amdhsa--gfx950"')
    o.append(".text")
    o.append(f".globl {NAME}_kernel")
    o.append(".p2align 8")
    o.append(f".type {NAME}_kernel,@function")
    lab(f"{NAME}_kernel")
    e("s_cmp_ge_u32 s2, 256")
    e("s_cbranch_scc1 L_end")
    if stamps:
        for i in range(1, 10):
            e(f"s_mov_b32 s{48+2*i}, 0")
            e(f"s_mov_b32 s{49+2*i}, 0")
    stamp(0)
    e("s_load_dwordx16 s[4:19], s[0:1], 0")
    e("s_load_dwordx2 s[20:21], s[0:1], 64")
    e("v_and_b32 v1, 63, v0                 ; lane")
    e("v_lshrrev_b32 v2, 6, v0")
    e("v_and_b32 v3, 15, v0                 ; j")
    e("v_readfirstlane_b32 s22, v2")
    e("v_lshlrev_b32 v4, 4, v1")
    e("v_lshl_add_u32 v4, v2, 14, v4")
    e("s_lshl_b32 s32, s2, 18               ; wg*256KiB")
    e("s_add_u32 s33, s32, 4096")
    e("s_add_u32 s34, s32, 8192")
    e("s_add_u32 s35, s32, 12288")
    e("s_lshr_b32 s3, s2, 3                 ; head")
    e("s_lshl_b32 s36, s3, 8                ; head*256")
    e("v_lshlrev_b32 v5, 4, v3")
    e("v_add_u32 v5, s36, v5")
    e("s_and_b32 s37, s2, 7                 ; split")
    e("s_or_b32 s37, s37, s22")
    e("v_bfe_u32 v2, v0, 4, 1               ; g&1")
    e("v_lshl_add_u32 v2, v2, 3, v5")
    e("v_mov_b32 v0, 0")
    e("s_mov_b32 s26, 0x4000000")
    e("s_mov_b32 s27, 0x00020000")
    e("s_mov_b32 s30, 0x4000000")
    e("s_mov_b32 s31, 0x00020000")
    e("s_waitcnt lgkmcnt(0)")
    stamp(1)
    e("s_mov_b32 s24, s6")
    e("s_mov_b32 s25, s7")
    e("s_mov_b32 s28, s8")
    e("s_mov_b32 s29, s9")
    e("s_cmp_lg_u32 s37, 0")
    e("s_cbranch_scc1 L_notree0")
    e(f"global_load_dwordx4 {r4(vKT)}, v5, s[10:11]")
    e(f"global_load_dwordx2 {r2(vVT)}, v2, s[12:13]")
    e("global_load_ushort v2, v0, s[14:15]")
    lab("L_notree0")
    e(f"global_load_dwordx4 {r4(vQ)}, v5, s[4:5]")
    def ld(dst, srd, n):
        e(f"buffer_load_dwordx4 {r4(dst)}, v4, s[{srd}:{srd+3}], s{32 + n // 4} offen offset:{(n % 4) * 1024} {ldflag}")
    for n in range(16):
        ld(K(n), 24, n)
    for n in range(8):
        ld(V(n), 28, n)
    for n in range(16):
        cnt = 23 if n <= 8 else 23 - (n - 8)
        e(f"s_waitcnt vmcnt({cnt})")
        if n == 0: stamp(2)
        if n == 15: stamp(3)
        e(f"v_dot2_f32_bf16 v{vT+n}, v{K(n)}, v{vQ}, 0")
        for r in range(1, 4):
            e(f"v_dot2_f32_bf16 v{vT+n}, v{K(n)+r}, v{vQ+r}, v{vT+n}")
        if n < 8:
            ld(V(8 + n), 28, 8 + n)
    vM = 60
    vA0 = 64
    vA1 = 68
    vAcc = 72
    vY = 76
    vMx = 77
    vP = 78
    vL = 79
    vPB = 80
    vYT = 81
    vtmp = 82
    vtmp2 = 83
    vPT = 84
    e("s_cmp_lg_u32 s37, 0")
    e("s_cbranch_scc1 L_notree1")
    e(f"v_dot2_f32_bf16 v{vYT}, v{vKT}, v{vQ}, 0")
    for r in range(1, 4):
        e(f"v_dot2_f32_bf16 v{vYT}, v{vKT+r}, v{vQ+r}, v{vYT}")
    e("v_lshlrev_b32 v2, 16, v2")
    e("v_sub_f32 v2, 1.0, v2")
    e(f"v_mul_f32 v2, 0x{NEG1E9:08x}, v2")
    e("s_nop 1")
    for sh in (8, 4, 2, 1):
        e(f"v_add_f32_dpp v{vYT}, v{vYT}, v{vYT} row_ror:{sh} row_mask:0xf bank_mask:0xf")
        e("s_nop 1")
    e(f"v_mov_b32 v{vtmp}, 0x{SCALE:08x}")
    e(f"v_fma_f32 v{vYT}, v{vYT}, v{vtmp}, v2")
    e(f"v_mul_f32 v{vYT}, 0x{LOG2E:08x}, v{vYT}")
    e("s_branch L_tree1done")
    lab("L_notree1")
    e(f"v_mov_b32 v{vYT}, 0xff800000")
    e(f"v_mov_b32 v{vVT}, 0")
    e(f"v_mov_b32 v{vVT+1}, 0")
    lab("L_tree1done")
    e(f"v_and_b32 v{vtmp}, 1, v3")
    e(f"v_lshlrev_b32 v{vtmp}, 4, v{vtmp}")
    e(f"v_mov_b32 v{vtmp2}, 0xffff")
    e(f"v_lshlrev_b32 v{vtmp}, v{vtmp}, v{vtmp2}")
    e(f"v_lshrrev_b32 v{vtmp2}, 1, v3")
    for r in range(4):
        e(f"v_cmp_eq_u32 vcc, {r}, v{vtmp2}")
        e("s_nop 1")
        e(f"v_cndmask_b32 v{vM+r}, 0, v{vtmp}, vcc")
    e("s_mov_b32 s40, 0xcccccccc")
    e("s_mov_b32 s41, 0xcccccccc")
    e("s_mov_b32 s42, 0xaaaaaaaa")
    e("s_mov_b32 s43, 0xaaaaaaaa")
    T = lambda n: vT + n
    for n in range(8):
        e(f"v_add_f32_dpp v{T(n)}, v{T(n)}, v{T(n)} row_ror:8 row_mask:0xf bank_mask:0x3")
    for n in range(8):
        e(f"v_add_f32_dpp v{T(n)}, v{T(n+8)}, v{T(n+8)} row_ror:8 row_mask:0xf bank_mask:0xc")
    e("s_nop 1")
    for n in range(4):
        e(f"v_add_f32_dpp v{T(n)}, v{T(n)}, v{T(n)} row_half_mirror row_mask:0xf bank_mask:0x5")
    for n in range(4):
        e(f"v_add_f32_dpp v{T(n)}, v{T(n+4)}, v{T(n+4)} row_half_mirror row_mask:0xf bank_mask:0xa")
    e("s_nop 1")
    for n in range(4):
        e(f"v_add_f32_dpp v{T(n)}, v{T(n)}, v{T(n)} quad_perm:[2,3,0,1] row_mask:0xf bank_mask:0xf")
    e(f"v_cndmask_b32 v{T(0)}, v{T(0)}, v{T(2)}, s[40:41]")
    e(f"v_cndmask_b32 v{T(1)}, v{T(1)}, v{T(3)}, s[40:41]")
    e("s_nop 1")
    for n in range(2):
        e(f"v_add_f32_dpp v{T(n)}, v{T(n)}, v{T(n)} quad_perm:[1,0,3,2] row_mask:0xf bank_mask:0xf")
    e(f"v_cndmask_b32 v{T(0)}, v{T(0)}, v{T(1)}, s[42:43]")
    e(f"v_mul_f32 v{vY}, 0x{C:08x}, v{T(0)}")
    e(f"v_max_f32 v{vMx}, v{vY}, v{vYT}")
    e("s_nop 1")
    for sh in (8, 4, 2, 1):
        e(f"v_max_f32_dpp v{vMx}, v{vMx}, v{vMx} row_ror:{sh} row_mask:0xf bank_mask:0xf")
        e("s_nop 1")
    e(f"v_mov_b32 v{vtmp}, v{vMx}")
    e("s_nop 1")
    e(f"v_permlane32_swap_b32 v{vMx}, v{vtmp}")
    e(f"v_max_f32 v{vMx}, v{vMx}, v{vtmp}")
    e(f"v_mov_b32 v{vtmp}, v{vMx}")
    e("s_nop 1")
    e(f"v_permlane16_swap_b32 v{vMx}, v{vtmp}")
    e(f"v_max_f32 v{vMx}, v{vMx}, v{vtmp}")
    e(f"v_sub_f32 v{vP}, v{vY}, v{vMx}")
    e(f"v_sub_f32 v{vPT}, v{vYT}, v{vMx}")
    e(f"v_exp_f32 v{vP}, v{vP}")
    e(f"v_exp_f32 v{vPT}, v{vPT}")
    e("s_nop 0")
    e(f"v_cvt_pk_bf16_f32 v{vPB}, v{vP}, v{vP}")
    e(f"v_lshlrev_b32 v{vAcc}, 16, v{vVT}")
    e(f"v_and_b32 v{vAcc+1}, 0xffff0000, v{vVT}")
    e(f"v_lshlrev_b32 v{vAcc+2}, 16, v{vVT+1}")
    e(f"v_and_b32 v{vAcc+3}, 0xffff0000, v{vVT+1}")
    for r in range(4):
        e(f"v_mul_f32 v{vAcc+r}, v{vPT}, v{vAcc+r}")
    e(f"v_mov_b32 v{vL}, v{vP}")
    e("s_nop 1")
    for sh in (8, 4, 2, 1):
        e(f"v_add_f32_dpp v{vL}, v{vL}, v{vL} row_ror:{sh} row_mask:0xf bank_mask:0xf")
        e("s_nop 1")
    e(f"v_mov_b32 v{vtmp}, v{vL}")
    e("s_nop 1")
    e(f"v_permlane32_swap_b32 v{vL}, v{vtmp}")
    e(f"v_add_f32 v{vL}, v{vL}, v{vtmp}")
    e(f"v_mov_b32 v{vtmp}, v{vL}")
    e("s_nop 1")
    e(f"v_permlane16_swap_b32 v{vL}, v{vtmp}")
    e(f"v_add_f32 v{vL}, v{vL}, v{vtmp}")
    e(f"v_add_f32 v{vL}, v{vL}, v{vPT}")
    e(f"v_lshrrev_b32 v{vtmp}, 4, v1")
    e(f"v_lshlrev_b32 v{vtmp}, 4, v{vtmp}")
    e(f"v_lshl_add_u32 v{vtmp}, v3, 5, v{vtmp}")
    e("s_lshl_b32 s38, s22, 9")
    e(f"v_add_u32 v{vtmp}, s38, v{vtmp}")
    e("s_lshl_b32 s38, s22, 3")
    e("s_add_u32 s38, s38, 8192")
    e(f"v_mov_b32 v{vtmp2}, s38")
    e(f"v_mov_b32 v86, v{vMx}")
    e(f"v_mov_b32 v87, v{vL}")
    for n in range(16):
        A = vA0 if n % 2 == 0 else vA1
        for r in range(4):
            e(f"v_and_b32_dpp v{A+r}, v{vPB}, v{vM+r} row_newbcast:{n} row_mask:0xf bank_mask:0xf")
        e(f"s_waitcnt vmcnt({15-n})")
        e("s_nop 0")
        e(f"v_mfma_f32_16x16x32_bf16 {r4(vAcc)}, {r4(A)}, {r4(V(n))}, {r4(vAcc)}")
    e("s_nop 7")
    stamp(4)
    e("s_mov_b32 exec_hi, 0")
    e(f"ds_write_b128 v{vtmp}, {r4(vAcc)}")
    e(f"ds_write_b64 v{vtmp2}, v[86:87]")
    e("s_mov_b64 exec, -1")
    e("s_waitcnt lgkmcnt(0)")
    e("s_barrier")
    stamp(5)
    e("s_cmp_lg_u32 s22, 0")
    e("s_cbranch_scc1 L_dump")
    vO = 28
    e("v_lshlrev_b32 v4, 3, v1              ; lane*8")
    e("v_lshlrev_b32 v5, 3, v3              ; j*8")
    e("ds_read_b64 v[60:61], v5 offset:8192")
    for w in range(16):
        e(f"ds_read_b64 {r2(vO+2*w)}, v4 offset:{w*512}")
    e("s_waitcnt lgkmcnt(15)")
    e("v_mov_b32 v62, v60")
    e("s_nop 1")
    for sh in (8, 4, 2, 1):
        e(f"v_max_f32_dpp v62, v62, v62 row_ror:{sh} row_mask:0xf bank_mask:0xf")
        e("s_nop 1")
    e("v_sub_f32 v63, v60, v62")
    e("v_exp_f32 v63, v63                   ; f_w")
    e("s_nop 0")
    e("v_mul_f32 v64, v63, v61")
    e("s_nop 1")
    for sh in (8, 4, 2, 1):
        e(f"v_add_f32_dpp v64, v64, v64 row_ror:{sh} row_mask:0xf bank_mask:0xf")
        e("s_nop 1")
    e("v_mov_b32 v68, 0")
    e("v_mov_b32 v69, 0")
    e("v_mov_b32 v70, v62")
    e("v_mov_b32 v71, v64")
    e("s_waitcnt lgkmcnt(0)")
    for w in range(16):
        e(f"v_fmac_f32_dpp v68, v63, v{vO+2*w} row_newbcast:{w} row_mask:0xf bank_mask:0xf")
        e(f"v_fmac_f32_dpp v69, v63, v{vO+2*w+1} row_newbcast:{w} row_mask:0xf bank_mask:0xf")
    e("v_lshlrev_b32 v4, 4, v1              ; lane*16")
    e("s_lshl_b32 s38, s2, 10")
    e("v_add_u32 v5, s38, v4")
    e("global_store_dwordx4 v5, v[68:71], s[20:21] sc1")
    e("s_lshl_b32 s39, s3, 2                ; head*4")
    e("s_add_u32 s39, s39, 128")
    e("v_mov_b32 v6, s39")
    e("v_mov_b32 v7, 1")
    e("s_waitcnt vmcnt(0)")
    stamp(6)
    e("s_mov_b64 exec, 1")
    e("global_atomic_add v8, v6, v7, s[18:19] sc0")
    e("s_waitcnt vmcnt(0)")
    e("v_readfirstlane_b32 s38, v8")
    e("s_mov_b64 exec, -1")
    stamp(7)
    e("s_cmp_lg_u32 s38, 7")
    e("s_cbranch_scc1 L_dump")
    e("s_lshl_b32 s38, s3, 13               ; head*8*1024")
    e("v_add_u32 v5, s38, v4")
    e("v_add_u32 v6, 4096, v5")
    for s in range(8):
        e(f"global_load_dwordx4 {r4(28+4*s)}, v{5 if s < 4 else 6}, s[20:21] offset:{(s%4)*1024} sc1")
    e("s_lshl_b32 s38, s3, 8")
    e("v_lshlrev_b32 v7, 2, v1")
    e("v_add_u32 v7, s38, v7")
    e("s_waitcnt vmcnt(0)")
    Ms = [28 + 4 * s + 2 for s in range(8)]
    e(f"v_max3_f32 v60, v{Ms[0]}, v{Ms[1]}, v{Ms[2]}")
    e(f"v_max3_f32 v60, v60, v{Ms[3]}, v{Ms[4]}")
    e(f"v_max3_f32 v60, v60, v{Ms[5]}, v{Ms[6]}")
    e(f"v_max_f32 v60, v60, v{Ms[7]}")
    for s in range(8):
        e(f"v_sub_f32 v{Ms[s]}, v{Ms[s]}, v60")
    for s in range(8):
        e(f"v_exp_f32 v{Ms[s]}, v{Ms[s]}")
    e("s_nop 0")
    e(f"v_mul_f32 v61, v{Ms[0]}, v{28}")
    e(f"v_mul_f32 v62, v{Ms[0]}, v{29}")
    e(f"v_mul_f32 v63, v{Ms[0]}, v{31}")
    for s in range(1, 8):
        e(f"v_fmac_f32 v61, v{Ms[s]}, v{28+4*s}")
        e(f"v_fmac_f32 v62, v{Ms[s]}, v{28+4*s+1}")
        e(f"v_fmac_f32 v63, v{Ms[s]}, v{28+4*s+3}")
    e("v_rcp_f32 v63, v63")
    e("s_nop 0")
    e("v_mul_f32 v61, v61, v63")
    e("v_mul_f32 v62, v62, v63")
    e("v_cvt_pk_bf16_f32 v61, v61, v62")
    e("global_store_dword v7, v61, s[16:17]")
    if stamps:
        e("s_waitcnt vmcnt(0)")
    stamp(8)
    lab("L_dump")
    dump_stamps(9, "x")
    lab("L_end")
    e("s_endpgm")
    o.append('.section .rodata,"a"')
    o.append(".p2align 6")
    o.append(f".amdhsa_kernel {NAME}_kernel")
    o.append("  .amdhsa_next_free_vgpr 128")
    o.append("  .amdhsa_next_free_sgpr 72")
    o.append("  .amdhsa_accum_offset 128")
    o.append("  .amdhsa_group_segment_fixed_size 0")
    o.append("  .amdhsa_kernarg_size 72")
    o.append("  .amdhsa_user_sgpr_count 2")
    o.append("  .amdhsa_user_sgpr_kernarg_segment_ptr 1")
    o.append("  .amdhsa_system_sgpr_workgroup_id_x 1")
    o.append(".end_amdhsa_kernel")
    return "\n".join(o) + "\n"

if __name__ == "__main__":
    out = sys.argv[1]
    flag = sys.argv[2] if len(sys.argv) > 2 else "nt"
    open(out, "w").write(gen(flag if flag != "none" else "", stamps=(sys.argv[3] if len(sys.argv) > 3 else False)))
```

```python
import struct, sys, math

NAME = "standalone__tree_speculative_verify_tree_attention_over_candidate_token_tree__decode"

def f2u(x):
    return struct.unpack("<I", struct.pack("<f", x))[0]

HEADER = """; Kernarg layout for this problem (72 bytes, ptrs only, base s[0:1]):
"""

def gen(ldflag="nt", stamps=False):
    o = []
    nst = [0]
    def stamp(i):
        if stamps:
            o.append(f"    s_memrealtime s[{48+2*i}:{49+2*i}]")
            o.append("    s_waitcnt lgkmcnt(0)")
    def dump_stamps(n, lbl):
        if stamps == "dbg":
            o.append("    s_cmp_eq_u32 s64, 0")
            o.append("    s_cbranch_scc1 L_end")
            o.append("    s_mov_b64 exec, 1")
            o.append("    v_mov_b32 v10, 0")
            o.append("    s_not_b32 s46, s48")
            o.append("    v_mov_b32 v12, s46")
            o.append("    global_atomic_umax v10, v12, s[18:19]")
            for i in (1, 2, 5, 8):
                o.append(f"    v_mov_b32 v{13+i}, s{48+2*i}")
                o.append(f"    global_atomic_umax v10, v{13+i}, s[18:19] offset:{4*(1+(1,2,5,8).index(i))}")
        elif stamps:
            o.append("    s_mov_b64 exec, 1")
            o.append("    s_lshl_b32 s46, s2, 4")
            o.append("    s_add_u32 s46, s46, s22")
            o.append("    s_lshl_b32 s46, s46, 7")
            o.append("    s_add_u32 s46, s46, 0x100000")
            o.append("    v_mov_b32 v10, s46")
            for i in range(n):
                o.append(f"    v_mov_b32 v12, s{48+2*i}")
                o.append(f"    v_mov_b32 v13, s{49+2*i}")
                o.append(f"    global_store_dwordx2 v10, v[12:13], s[20:21] offset:{8*i}")
                o.append("    s_nop 1")
    def e(s):
        o.append("    " + s)
    def lab(s):
        o.append(s + ":")
    C = f2u((1.0 / math.sqrt(128.0)) * math.log2(math.e))
    SCALE = f2u(1.0 / math.sqrt(128.0))
    LOG2E = f2u(math.log2(math.e))
    NEG1E9 = f2u(-1.0e9)
    vQ = 6
    vT = 10
    vVT = 26
    vK = 28
    vV = 92
    vKT = 124
    def K(n): return vK + 4 * n
    def V(n): return (vV + 4 * n) if n < 8 else K(n - 8)
    def r4(b): return f"v[{b}:{b+3}]"
    def r2(b): return f"v[{b}:{b+1}]"

    o.append(HEADER + "; @launch grid=(256,1,1) block=(1024,1,1) lds=8448")
    o.append('.amdgcn_target "amdgcn-amd-amdhsa--gfx950"')
    o.append(".text")
    o.append(f".globl {NAME}_kernel")
    o.append(".p2align 8")
    o.append(f".type {NAME}_kernel,@function")
    lab(f"{NAME}_kernel")
    e("s_cmp_ge_u32 s2, 256")
    e("s_cbranch_scc1 L_end")
    if stamps:
        for i in range(1, 10):
            e(f"s_mov_b32 s{48+2*i}, 0")
            e(f"s_mov_b32 s{49+2*i}, 0")
    stamp(0)
    e("s_load_dwordx16 s[4:19], s[0:1], 0")
    e("s_load_dwordx2 s[20:21], s[0:1], 64")
    e("v_and_b32 v1, 63, v0                 ; lane")
    e("v_lshrrev_b32 v2, 6, v0")
    e("v_and_b32 v3, 15, v0                 ; j")
    e("v_readfirstlane_b32 s22, v2")
    e("v_lshlrev_b32 v4, 4, v1")
    e("v_lshl_add_u32 v4, v2, 14, v4")
    e("s_lshl_b32 s32, s2, 18               ; wg*256KiB")
    e("s_add_u32 s33, s32, 4096")
    e("s_add_u32 s34, s32, 8192")
    e("s_add_u32 s35, s32, 12288")
    e("s_lshr_b32 s3, s2, 3                 ; head")
    e("s_lshl_b32 s36, s3, 8                ; head*256")
    e("v_lshlrev_b32 v5, 4, v3")
    e("v_add_u32 v5, s36, v5")
    e("s_and_b32 s37, s2, 7                 ; split")
    e("s_or_b32 s37, s37, s22")
    e("v_bfe_u32 v2, v0, 4, 1               ; g&1")
    e("v_lshl_add_u32 v2, v2, 3, v5")
    e("v_mov_b32 v0, 0")
    e("s_mov_b32 s26, 0x4000000")
    e("s_mov_b32 s27, 0x00020000")
    e("s_mov_b32 s30, 0x4000000")
    e("s_mov_b32 s31, 0x00020000")
    e("s_waitcnt lgkmcnt(0)")
    stamp(1)
    e("s_mov_b32 s24, s6")
    e("s_mov_b32 s25, s7")
    e("s_mov_b32 s28, s8")
    e("s_mov_b32 s29, s9")
    e("s_cmp_lg_u32 s37, 0")
    e("s_cbranch_scc1 L_notree0")
    e(f"global_load_dwordx4 {r4(vKT)}, v5, s[10:11]")
    e(f"global_load_dwordx2 {r2(vVT)}, v2, s[12:13]")
    e("global_load_ushort v2, v0, s[14:15]")
    lab("L_notree0")
    e(f"global_load_dwordx4 {r4(vQ)}, v5, s[4:5]")
    def ld(dst, srd, n):
        e(f"buffer_load_dwordx4 {r4(dst)}, v4, s[{srd}:{srd+3}], s{32 + n // 4} offen offset:{(n % 4) * 1024} {ldflag}")
    for n in range(16):
        ld(K(n), 24, n)
    for n in range(8):
        ld(V(n), 28, n)
    for n in range(16):
        cnt = 23 if n <= 8 else 23 - (n - 8)
        e(f"s_waitcnt vmcnt({cnt})")
        if n == 0: stamp(2)
        if n == 15: stamp(3)
        e(f"v_dot2_f32_bf16 v{vT+n}, v{K(n)}, v{vQ}, 0")
        for r in range(1, 4):
            e(f"v_dot2_f32_bf16 v{vT+n}, v{K(n)+r}, v{vQ+r}, v{vT+n}")
        if n < 8:
            ld(V(8 + n), 28, 8 + n)
    vM = 60
    vA0 = 64
    vA1 = 68
    vAcc = 72
    vY = 76
    vMx = 77
    vP = 78
    vL = 79
    vPB = 80
    vYT = 81
    vtmp = 82
    vtmp2 = 83
    vPT = 84
    e("s_cmp_lg_u32 s37, 0")
    e("s_cbranch_scc1 L_notree1")
    e(f"v_dot2_f32_bf16 v{vYT}, v{vKT}, v{vQ}, 0")
    for r in range(1, 4):
        e(f"v_dot2_f32_bf16 v{vYT}, v{vKT+r}, v{vQ+r}, v{vYT}")
    e("v_lshlrev_b32 v2, 16, v2")
    e("v_sub_f32 v2, 1.0, v2")
    e(f"v_mul_f32 v2, 0x{NEG1E9:08x}, v2")
    e("s_nop 1")
    for sh in (8, 4, 2, 1):
        e(f"v_add_f32_dpp v{vYT}, v{vYT}, v{vYT} row_ror:{sh} row_mask:0xf bank_mask:0xf")
        e("s_nop 1")
    e(f"v_mov_b32 v{vtmp}, 0x{SCALE:08x}")
    e(f"v_fma_f32 v{vYT}, v{vYT}, v{vtmp}, v2")
    e(f"v_mul_f32 v{vYT}, 0x{LOG2E:08x}, v{vYT}")
    e("s_branch L_tree1done")
    lab("L_notree1")
    e(f"v_mov_b32 v{vYT}, 0xff800000")
    e(f"v_mov_b32 v{vVT}, 0")
    e(f"v_mov_b32 v{vVT+1}, 0")
    lab("L_tree1done")
    e(f"v_and_b32 v{vtmp}, 1, v3")
    e(f"v_lshlrev_b32 v{vtmp}, 4, v{vtmp}")
    e(f"v_mov_b32 v{vtmp2}, 0xffff")
    e(f"v_lshlrev_b32 v{vtmp}, v{vtmp}, v{vtmp2}")
    e(f"v_lshrrev_b32 v{vtmp2}, 1, v3")
    for r in range(4):
        e(f"v_cmp_eq_u32 vcc, {r}, v{vtmp2}")
        e("s_nop 1")
        e(f"v_cndmask_b32 v{vM+r}, 0, v{vtmp}, vcc")
    e("s_mov_b32 s40, 0xcccccccc")
    e("s_mov_b32 s41, 0xcccccccc")
    e("s_mov_b32 s42, 0xaaaaaaaa")
    e("s_mov_b32 s43, 0xaaaaaaaa")
    T = lambda n: vT + n
    for n in range(8):
        e(f"v_add_f32_dpp v{T(n)}, v{T(n)}, v{T(n)} row_ror:8 row_mask:0xf bank_mask:0x3")
    for n in range(8):
        e(f"v_add_f32_dpp v{T(n)}, v{T(n+8)}, v{T(n+8)} row_ror:8 row_mask:0xf bank_mask:0xc")
    e("s_nop 1")
    for n in range(4):
        e(f"v_add_f32_dpp v{T(n)}, v{T(n)}, v{T(n)} row_half_mirror row_mask:0xf bank_mask:0x5")
    for n in range(4):
        e(f"v_add_f32_dpp v{T(n)}, v{T(n+4)}, v{T(n+4)} row_half_mirror row_mask:0xf bank_mask:0xa")
    e("s_nop 1")
    for n in range(4):
        e(f"v_add_f32_dpp v{T(n)}, v{T(n)}, v{T(n)} quad_perm:[2,3,0,1] row_mask:0xf bank_mask:0xf")
    e(f"v_cndmask_b32 v{T(0)}, v{T(0)}, v{T(2)}, s[40:41]")
    e(f"v_cndmask_b32 v{T(1)}, v{T(1)}, v{T(3)}, s[40:41]")
    e("s_nop 1")
    for n in range(2):
        e(f"v_add_f32_dpp v{T(n)}, v{T(n)}, v{T(n)} quad_perm:[1,0,3,2] row_mask:0xf bank_mask:0xf")
    e(f"v_cndmask_b32 v{T(0)}, v{T(0)}, v{T(1)}, s[42:43]")
    e(f"v_mul_f32 v{vY}, 0x{C:08x}, v{T(0)}")
    e(f"v_max_f32 v{vMx}, v{vY}, v{vYT}")
    e("s_nop 1")
    for sh in (8, 4, 2, 1):
        e(f"v_max_f32_dpp v{vMx}, v{vMx}, v{vMx} row_ror:{sh} row_mask:0xf bank_mask:0xf")
        e("s_nop 1")
    e(f"v_mov_b32 v{vtmp}, v{vMx}")
    e("s_nop 1")
    e(f"v_permlane32_swap_b32 v{vMx}, v{vtmp}")
    e(f"v_max_f32 v{vMx}, v{vMx}, v{vtmp}")
    e(f"v_mov_b32 v{vtmp}, v{vMx}")
    e("s_nop 1")
    e(f"v_permlane16_swap_b32 v{vMx}, v{vtmp}")
    e(f"v_max_f32 v{vMx}, v{vMx}, v{vtmp}")
    e(f"v_sub_f32 v{vP}, v{vY}, v{vMx}")
    e(f"v_sub_f32 v{vPT}, v{vYT}, v{vMx}")
    e(f"v_exp_f32 v{vP}, v{vP}")
    e(f"v_exp_f32 v{vPT}, v{vPT}")
    e("s_nop 0")
    e(f"v_cvt_pk_bf16_f32 v{vPB}, v{vP}, v{vP}")
    e(f"v_lshlrev_b32 v{vAcc}, 16, v{vVT}")
    e(f"v_and_b32 v{vAcc+1}, 0xffff0000, v{vVT}")
    e(f"v_lshlrev_b32 v{vAcc+2}, 16, v{vVT+1}")
    e(f"v_and_b32 v{vAcc+3}, 0xffff0000, v{vVT+1}")
    for r in range(4):
        e(f"v_mul_f32 v{vAcc+r}, v{vPT}, v{vAcc+r}")
    e(f"v_mov_b32 v{vL}, v{vP}")
    e("s_nop 1")
    for sh in (8, 4, 2, 1):
        e(f"v_add_f32_dpp v{vL}, v{vL}, v{vL} row_ror:{sh} row_mask:0xf bank_mask:0xf")
        e("s_nop 1")
    e(f"v_mov_b32 v{vtmp}, v{vL}")
    e("s_nop 1")
    e(f"v_permlane32_swap_b32 v{vL}, v{vtmp}")
    e(f"v_add_f32 v{vL}, v{vL}, v{vtmp}")
    e(f"v_mov_b32 v{vtmp}, v{vL}")
    e("s_nop 1")
    e(f"v_permlane16_swap_b32 v{vL}, v{vtmp}")
    e(f"v_add_f32 v{vL}, v{vL}, v{vtmp}")
    e(f"v_add_f32 v{vL}, v{vL}, v{vPT}")
    e(f"v_lshrrev_b32 v{vtmp}, 4, v1")
    e(f"v_lshlrev_b32 v{vtmp}, 4, v{vtmp}")
    e(f"v_lshl_add_u32 v{vtmp}, v3, 5, v{vtmp}")
    e("s_lshl_b32 s38, s22, 9")
    e(f"v_add_u32 v{vtmp}, s38, v{vtmp}")
    e("s_lshl_b32 s38, s22, 3")
    e("s_add_u32 s38, s38, 8192")
    e(f"v_mov_b32 v{vtmp2}, s38")
    e(f"v_mov_b32 v86, v{vMx}")
    e(f"v_mov_b32 v87, v{vL}")
    for n in range(16):
        A = vA0 if n % 2 == 0 else vA1
        for r in range(4):
            e(f"v_and_b32_dpp v{A+r}, v{vPB}, v{vM+r} row_newbcast:{n} row_mask:0xf bank_mask:0xf")
        e(f"s_waitcnt vmcnt({15-n})")
        e("s_nop 0")
        e(f"v_mfma_f32_16x16x32_bf16 {r4(vAcc)}, {r4(A)}, {r4(V(n))}, {r4(vAcc)}")
    e("s_nop 7")
    stamp(4)
    e("s_mov_b32 exec_hi, 0")
    e(f"ds_write_b128 v{vtmp}, {r4(vAcc)}")
    e(f"ds_write_b64 v{vtmp2}, v[86:87]")
    e("s_mov_b64 exec, -1")
    e("s_waitcnt lgkmcnt(0)")
    e("s_barrier")
    stamp(5)
    e("s_cmp_lg_u32 s22, 0")
    e("s_cbranch_scc1 L_dump")
    vO = 28
    e("v_lshlrev_b32 v4, 3, v1              ; lane*8")
    e("v_lshlrev_b32 v5, 3, v3              ; j*8")
    e("ds_read_b64 v[60:61], v5 offset:8192")
    for w in range(16):
        e(f"ds_read_b64 {r2(vO+2*w)}, v4 offset:{w*512}")
    e("s_waitcnt lgkmcnt(15)")
    e("v_mov_b32 v62, v60")
    e("s_nop 1")
    for sh in (8, 4, 2, 1):
        e(f"v_max_f32_dpp v62, v62, v62 row_ror:{sh} row_mask:0xf bank_mask:0xf")
        e("s_nop 1")
    e("v_sub_f32 v63, v60, v62")
    e("v_exp_f32 v63, v63                   ; f_w")
    e("s_nop 0")
    e("v_mul_f32 v64, v63, v61")
    e("s_nop 1")
    for sh in (8, 4, 2, 1):
        e(f"v_add_f32_dpp v64, v64, v64 row_ror:{sh} row_mask:0xf bank_mask:0xf")
        e("s_nop 1")
    e("v_mov_b32 v68, 0")
    e("v_mov_b32 v69, 0")
    e("v_mov_b32 v70, v62")
    e("v_mov_b32 v71, v64")
    e("s_waitcnt lgkmcnt(0)")
    for w in range(16):
        e(f"v_fmac_f32_dpp v68, v63, v{vO+2*w} row_newbcast:{w} row_mask:0xf bank_mask:0xf")
        e(f"v_fmac_f32_dpp v69, v63, v{vO+2*w+1} row_newbcast:{w} row_mask:0xf bank_mask:0xf")
    e("v_lshlrev_b32 v4, 4, v1              ; lane*16")
    e("s_lshl_b32 s38, s2, 10")
    e("v_add_u32 v5, s38, v4")
    e("global_store_dwordx4 v5, v[68:71], s[20:21] sc1")
    e("s_lshl_b32 s39, s3, 2                ; head*4")
    e("s_add_u32 s39, s39, 128")
    e("v_mov_b32 v6, s39")
    e("v_mov_b32 v7, 1")
    e("s_waitcnt vmcnt(0)")
    stamp(6)
    e("s_mov_b64 exec, 1")
    e("global_atomic_add v8, v6, v7, s[18:19] sc0")
    e("s_waitcnt vmcnt(0)")
    e("v_readfirstlane_b32 s38, v8")
    e("s_mov_b64 exec, -1")
    stamp(7)
    e("s_cmp_lg_u32 s38, 7")
    e("s_cbranch_scc1 L_dump")
    e("s_lshl_b32 s38, s3, 13               ; head*8*1024")
    e("v_add_u32 v5, s38, v4")
    e("v_add_u32 v6, 4096, v5")
    for s in range(8):
        e(f"global_load_dwordx4 {r4(28+4*s)}, v{5 if s < 4 else 6}, s[20:21] offset:{(s%4)*1024} sc1")
    e("s_lshl_b32 s38, s3, 8")
    e("v_lshlrev_b32 v7, 2, v1")
    e("v_add_u32 v7, s38, v7")
    e("s_waitcnt vmcnt(0)")
    Ms = [28 + 4 * s + 2 for s in range(8)]
    e(f"v_max3_f32 v60, v{Ms[0]}, v{Ms[1]}, v{Ms[2]}")
    e(f"v_max3_f32 v60, v60, v{Ms[3]}, v{Ms[4]}")
    e(f"v_max3_f32 v60, v60, v{Ms[5]}, v{Ms[6]}")
    e(f"v_max_f32 v60, v60, v{Ms[7]}")
    for s in range(8):
        e(f"v_sub_f32 v{Ms[s]}, v{Ms[s]}, v60")
    for s in range(8):
        e(f"v_exp_f32 v{Ms[s]}, v{Ms[s]}")
    e("s_nop 0")
    e(f"v_mul_f32 v61, v{Ms[0]}, v{28}")
    e(f"v_mul_f32 v62, v{Ms[0]}, v{29}")
    e(f"v_mul_f32 v63, v{Ms[0]}, v{31}")
    for s in range(1, 8):
        e(f"v_fmac_f32 v61, v{Ms[s]}, v{28+4*s}")
        e(f"v_fmac_f32 v62, v{Ms[s]}, v{28+4*s+1}")
        e(f"v_fmac_f32 v63, v{Ms[s]}, v{28+4*s+3}")
    e("v_rcp_f32 v63, v63")
    e("s_nop 0")
    e("v_mul_f32 v61, v61, v63")
    e("v_mul_f32 v62, v62, v63")
    e("v_cvt_pk_bf16_f32 v61, v61, v62")
    e("global_store_dword v7, v61, s[16:17]")
    if stamps:
        e("s_waitcnt vmcnt(0)")
    stamp(8)
    lab("L_dump")
    dump_stamps(9, "x")
    lab("L_end")
    e("s_endpgm")
    o.append('.section .rodata,"a"')
    o.append(".p2align 6")
    o.append(f".amdhsa_kernel {NAME}_kernel")
    o.append("  .amdhsa_next_free_vgpr 128")
    o.append("  .amdhsa_next_free_sgpr 72")
    o.append("  .amdhsa_accum_offset 128")
    o.append("  .amdhsa_group_segment_fixed_size 0")
    o.append("  .amdhsa_kernarg_size 72")
    o.append("  .amdhsa_user_sgpr_count 2")
    o.append("  .amdhsa_user_sgpr_kernarg_segment_ptr 1")
    o.append("  .amdhsa_system_sgpr_workgroup_id_x 1")
    o.append(".end_amdhsa_kernel")
    return "\n".join(o) + "\n"

if __name__ == "__main__":
    out = sys.argv[1]
    flag = sys.argv[2] if len(sys.argv) > 2 else "nt"
    open(out, "w").write(gen(flag if flag != "none" else "", stamps=(sys.argv[3] if len(sys.argv) > 3 else False)))
```

```python
import struct, sys, math

NAME = "standalone__tree_speculative_verify_tree_attention_over_candidate_token_tree__decode"

def f2u(x):
    return struct.unpack("<I", struct.pack("<f", x))[0]

HEADER = """; Kernarg layout for this problem (72 bytes, ptrs only, base s[0:1]):
"""

def gen(ldflag="nt", stamps=False, remap=0):
    o = []
    nst = [0]
    def stamp(i):
        if stamps:
            o.append(f"    s_memrealtime s[{48+2*i}:{49+2*i}]")
            o.append("    s_waitcnt lgkmcnt(0)")
    def dump_stamps(n, lbl):
        if stamps == "dbg":
            o.append("    s_cmp_eq_u32 s64, 0")
            o.append("    s_cbranch_scc1 L_end")
            o.append("    s_mov_b64 exec, 1")
            o.append("    v_mov_b32 v10, 0")
            o.append("    s_not_b32 s46, s48")
            o.append("    v_mov_b32 v12, s46")
            o.append("    global_atomic_umax v10, v12, s[18:19]")
            for i in (1, 2, 5, 8):
                o.append(f"    v_mov_b32 v{13+i}, s{48+2*i}")
                o.append(f"    global_atomic_umax v10, v{13+i}, s[18:19] offset:{4*(1+(1,2,5,8).index(i))}")
        elif stamps:
            o.append("    s_mov_b64 exec, 1")
            o.append("    s_lshl_b32 s46, s47, 4")
            o.append("    s_add_u32 s46, s46, s22")
            o.append("    s_lshl_b32 s46, s46, 7")
            o.append("    s_add_u32 s46, s46, 0x100000")
            o.append("    v_mov_b32 v10, s46")
            for i in range(n):
                o.append(f"    v_mov_b32 v12, s{48+2*i}")
                o.append(f"    v_mov_b32 v13, s{49+2*i}")
                o.append(f"    global_store_dwordx2 v10, v[12:13], s[20:21] offset:{8*i}")
                o.append("    s_nop 1")
    def e(s):
        o.append("    " + s)
    def lab(s):
        o.append(s + ":")
    C = f2u((1.0 / math.sqrt(128.0)) * math.log2(math.e))
    SCALE = f2u(1.0 / math.sqrt(128.0))
    LOG2E = f2u(math.log2(math.e))
    NEG1E9 = f2u(-1.0e9)
    vQ = 6
    vT = 10
    vVT = 26
    vK = 28
    vV = 92
    vKT = 124
    def K(n): return vK + 4 * n
    def V(n): return (vV + 4 * n) if n < 8 else K(n - 8)
    def r4(b): return f"v[{b}:{b+3}]"
    def r2(b): return f"v[{b}:{b+1}]"

    o.append(HEADER + "; @launch grid=(256,1,1) block=(1024,1,1) lds=8448")
    o.append('.amdgcn_target "amdgcn-amd-amdhsa--gfx950"')
    o.append(".text")
    o.append(f".globl {NAME}_kernel")
    o.append(".p2align 8")
    o.append(f".type {NAME}_kernel,@function")
    lab(f"{NAME}_kernel")
    e("s_cmp_ge_u32 s2, 256")
    e("s_cbranch_scc1 L_end")
    e("s_mov_b32 s47, s2")
    if remap == 1:
        e("s_and_b32 s3, s2, 31")
        e("s_lshl_b32 s3, s3, 3")
        e("s_lshr_b32 s2, s2, 5")
        e("s_add_u32 s2, s2, s3")
    if stamps:
        for i in range(1, 10):
            e(f"s_mov_b32 s{48+2*i}, 0")
            e(f"s_mov_b32 s{49+2*i}, 0")
    stamp(0)
    e("s_load_dwordx16 s[4:19], s[0:1], 0")
    e("s_load_dwordx2 s[20:21], s[0:1], 64")
    e("v_and_b32 v1, 63, v0                 ; lane")
    e("v_lshrrev_b32 v2, 6, v0")
    e("v_and_b32 v3, 15, v0                 ; j")
    e("v_readfirstlane_b32 s22, v2")
    e("v_lshlrev_b32 v4, 4, v1")
    if remap == 2:
        e("v_and_b32 v5, 3, v2")
        e("v_lshl_add_u32 v4, v5, 14, v4")
        e("v_lshrrev_b32 v5, 2, v2")
        e("v_lshl_add_u32 v4, v5, 19, v4")
        e("s_lshr_b32 s32, s2, 3")
        e("s_lshl_b32 s32, s32, 21")
        e("s_and_b32 s33, s2, 7")
        e("s_lshl_b32 s33, s33, 16")
        e("s_add_u32 s32, s32, s33")
    else:
        e("v_lshl_add_u32 v4, v2, 14, v4")
        e("s_lshl_b32 s32, s2, 18               ; wg*256KiB")
    e("s_add_u32 s33, s32, 4096")
    e("s_add_u32 s34, s32, 8192")
    e("s_add_u32 s35, s32, 12288")
    e("s_lshr_b32 s3, s2, 3                 ; head")
    e("s_lshl_b32 s36, s3, 8                ; head*256")
    e("v_lshlrev_b32 v5, 4, v3")
    e("v_add_u32 v5, s36, v5")
    e("s_and_b32 s37, s2, 7                 ; split")
    e("s_or_b32 s37, s37, s22")
    e("v_bfe_u32 v2, v0, 4, 1               ; g&1")
    e("v_lshl_add_u32 v2, v2, 3, v5")
    e("v_mov_b32 v0, 0")
    e("s_mov_b32 s26, 0x4000000")
    e("s_mov_b32 s27, 0x00020000")
    e("s_mov_b32 s30, 0x4000000")
    e("s_mov_b32 s31, 0x00020000")
    e("s_waitcnt lgkmcnt(0)")
    stamp(1)
    e("s_mov_b32 s24, s6")
    e("s_mov_b32 s25, s7")
    e("s_mov_b32 s28, s8")
    e("s_mov_b32 s29, s9")
    e("s_cmp_lg_u32 s37, 0")
    e("s_cbranch_scc1 L_notree0")
    e(f"global_load_dwordx4 {r4(vKT)}, v5, s[10:11]")
    e(f"global_load_dwordx2 {r2(vVT)}, v2, s[12:13]")
    e("global_load_ushort v2, v0, s[14:15]")
    lab("L_notree0")
    e(f"global_load_dwordx4 {r4(vQ)}, v5, s[4:5]")
    def ld(dst, srd, n):
        e(f"buffer_load_dwordx4 {r4(dst)}, v4, s[{srd}:{srd+3}], s{32 + n // 4} offen offset:{(n % 4) * 1024} {ldflag}")
    for n in range(16):
        ld(K(n), 24, n)
    for n in range(8):
        ld(V(n), 28, n)
    for n in range(16):
        cnt = 23 if n <= 8 else 23 - (n - 8)
        e(f"s_waitcnt vmcnt({cnt})")
        if n == 0: stamp(2)
        if n == 15: stamp(3)
        e(f"v_dot2_f32_bf16 v{vT+n}, v{K(n)}, v{vQ}, 0")
        for r in range(1, 4):
            e(f"v_dot2_f32_bf16 v{vT+n}, v{K(n)+r}, v{vQ+r}, v{vT+n}")
        if n < 8:
            ld(V(8 + n), 28, 8 + n)
    vM = 60
    vA0 = 64
    vA1 = 68
    vAcc = 72
    vY = 76
    vMx = 77
    vP = 78
    vL = 79
    vPB = 80
    vYT = 81
    vtmp = 82
    vtmp2 = 83
    vPT = 84
    e("s_cmp_lg_u32 s37, 0")
    e("s_cbranch_scc1 L_notree1")
    e(f"v_dot2_f32_bf16 v{vYT}, v{vKT}, v{vQ}, 0")
    for r in range(1, 4):
        e(f"v_dot2_f32_bf16 v{vYT}, v{vKT+r}, v{vQ+r}, v{vYT}")
    e("v_lshlrev_b32 v2, 16, v2")
    e("v_sub_f32 v2, 1.0, v2")
    e(f"v_mul_f32 v2, 0x{NEG1E9:08x}, v2")
    e("s_nop 1")
    for sh in (8, 4, 2, 1):
        e(f"v_add_f32_dpp v{vYT}, v{vYT}, v{vYT} row_ror:{sh} row_mask:0xf bank_mask:0xf")
        e("s_nop 1")
    e(f"v_mov_b32 v{vtmp}, 0x{SCALE:08x}")
    e(f"v_fma_f32 v{vYT}, v{vYT}, v{vtmp}, v2")
    e(f"v_mul_f32 v{vYT}, 0x{LOG2E:08x}, v{vYT}")
    e("s_branch L_tree1done")
    lab("L_notree1")
    e(f"v_mov_b32 v{vYT}, 0xff800000")
    e(f"v_mov_b32 v{vVT}, 0")
    e(f"v_mov_b32 v{vVT+1}, 0")
    lab("L_tree1done")
    e(f"v_and_b32 v{vtmp}, 1, v3")
    e(f"v_lshlrev_b32 v{vtmp}, 4, v{vtmp}")
    e(f"v_mov_b32 v{vtmp2}, 0xffff")
    e(f"v_lshlrev_b32 v{vtmp}, v{vtmp}, v{vtmp2}")
    e(f"v_lshrrev_b32 v{vtmp2}, 1, v3")
    for r in range(4):
        e(f"v_cmp_eq_u32 vcc, {r}, v{vtmp2}")
        e("s_nop 1")
        e(f"v_cndmask_b32 v{vM+r}, 0, v{vtmp}, vcc")
    e("s_mov_b32 s40, 0xcccccccc")
    e("s_mov_b32 s41, 0xcccccccc")
    e("s_mov_b32 s42, 0xaaaaaaaa")
    e("s_mov_b32 s43, 0xaaaaaaaa")
    T = lambda n: vT + n
    for n in range(8):
        e(f"v_add_f32_dpp v{T(n)}, v{T(n)}, v{T(n)} row_ror:8 row_mask:0xf bank_mask:0x3")
    for n in range(8):
        e(f"v_add_f32_dpp v{T(n)}, v{T(n+8)}, v{T(n+8)} row_ror:8 row_mask:0xf bank_mask:0xc")
    e("s_nop 1")
    for n in range(4):
        e(f"v_add_f32_dpp v{T(n)}, v{T(n)}, v{T(n)} row_half_mirror row_mask:0xf bank_mask:0x5")
    for n in range(4):
        e(f"v_add_f32_dpp v{T(n)}, v{T(n+4)}, v{T(n+4)} row_half_mirror row_mask:0xf bank_mask:0xa")
    e("s_nop 1")
    for n in range(4):
        e(f"v_add_f32_dpp v{T(n)}, v{T(n)}, v{T(n)} quad_perm:[2,3,0,1] row_mask:0xf bank_mask:0xf")
    e(f"v_cndmask_b32 v{T(0)}, v{T(0)}, v{T(2)}, s[40:41]")
    e(f"v_cndmask_b32 v{T(1)}, v{T(1)}, v{T(3)}, s[40:41]")
    e("s_nop 1")
    for n in range(2):
        e(f"v_add_f32_dpp v{T(n)}, v{T(n)}, v{T(n)} quad_perm:[1,0,3,2] row_mask:0xf bank_mask:0xf")
    e(f"v_cndmask_b32 v{T(0)}, v{T(0)}, v{T(1)}, s[42:43]")
    e(f"v_mul_f32 v{vY}, 0x{C:08x}, v{T(0)}")
    e(f"v_max_f32 v{vMx}, v{vY}, v{vYT}")
    e("s_nop 1")
    for sh in (8, 4, 2, 1):
        e(f"v_max_f32_dpp v{vMx}, v{vMx}, v{vMx} row_ror:{sh} row_mask:0xf bank_mask:0xf")
        e("s_nop 1")
    e(f"v_mov_b32 v{vtmp}, v{vMx}")
    e("s_nop 1")
    e(f"v_permlane32_swap_b32 v{vMx}, v{vtmp}")
    e(f"v_max_f32 v{vMx}, v{vMx}, v{vtmp}")
    e(f"v_mov_b32 v{vtmp}, v{vMx}")
    e("s_nop 1")
    e(f"v_permlane16_swap_b32 v{vMx}, v{vtmp}")
    e(f"v_max_f32 v{vMx}, v{vMx}, v{vtmp}")
    e(f"v_sub_f32 v{vP}, v{vY}, v{vMx}")
    e(f"v_sub_f32 v{vPT}, v{vYT}, v{vMx}")
    e(f"v_exp_f32 v{vP}, v{vP}")
    e(f"v_exp_f32 v{vPT}, v{vPT}")
    e("s_nop 0")
    e(f"v_cvt_pk_bf16_f32 v{vPB}, v{vP}, v{vP}")
    e(f"v_lshlrev_b32 v{vAcc}, 16, v{vVT}")
    e(f"v_and_b32 v{vAcc+1}, 0xffff0000, v{vVT}")
    e(f"v_lshlrev_b32 v{vAcc+2}, 16, v{vVT+1}")
    e(f"v_and_b32 v{vAcc+3}, 0xffff0000, v{vVT+1}")
    for r in range(4):
        e(f"v_mul_f32 v{vAcc+r}, v{vPT}, v{vAcc+r}")
    e(f"v_mov_b32 v{vL}, v{vP}")
    e("s_nop 1")
    for sh in (8, 4, 2, 1):
        e(f"v_add_f32_dpp v{vL}, v{vL}, v{vL} row_ror:{sh} row_mask:0xf bank_mask:0xf")
        e("s_nop 1")
    e(f"v_mov_b32 v{vtmp}, v{vL}")
    e("s_nop 1")
    e(f"v_permlane32_swap_b32 v{vL}, v{vtmp}")
    e(f"v_add_f32 v{vL}, v{vL}, v{vtmp}")
    e(f"v_mov_b32 v{vtmp}, v{vL}")
    e("s_nop 1")
    e(f"v_permlane16_swap_b32 v{vL}, v{vtmp}")
    e(f"v_add_f32 v{vL}, v{vL}, v{vtmp}")
    e(f"v_add_f32 v{vL}, v{vL}, v{vPT}")
    e(f"v_lshrrev_b32 v{vtmp}, 4, v1")
    e(f"v_lshlrev_b32 v{vtmp}, 4, v{vtmp}")
    e(f"v_lshl_add_u32 v{vtmp}, v3, 5, v{vtmp}")
    e("s_lshl_b32 s38, s22, 9")
    e(f"v_add_u32 v{vtmp}, s38, v{vtmp}")
    e("s_lshl_b32 s38, s22, 3")
    e("s_add_u32 s38, s38, 8192")
    e(f"v_mov_b32 v{vtmp2}, s38")
    e(f"v_mov_b32 v86, v{vMx}")
    e(f"v_mov_b32 v87, v{vL}")
    for n in range(16):
        A = vA0 if n % 2 == 0 else vA1
        for r in range(4):
            e(f"v_and_b32_dpp v{A+r}, v{vPB}, v{vM+r} row_newbcast:{n} row_mask:0xf bank_mask:0xf")
        e(f"s_waitcnt vmcnt({15-n})")
        e("s_nop 0")
        e(f"v_mfma_f32_16x16x32_bf16 {r4(vAcc)}, {r4(A)}, {r4(V(n))}, {r4(vAcc)}")
    e("s_nop 7")
    stamp(4)
    e("s_mov_b32 exec_hi, 0")
    e(f"ds_write_b128 v{vtmp}, {r4(vAcc)}")
    e(f"ds_write_b64 v{vtmp2}, v[86:87]")
    e("s_mov_b64 exec, -1")
    e("s_waitcnt lgkmcnt(0)")
    e("s_barrier")
    stamp(5)
    e("s_cmp_lg_u32 s22, 0")
    e("s_cbranch_scc1 L_dump")
    vO = 28
    e("v_lshlrev_b32 v4, 3, v1              ; lane*8")
    e("v_lshlrev_b32 v5, 3, v3              ; j*8")
    e("ds_read_b64 v[60:61], v5 offset:8192")
    for w in range(16):
        e(f"ds_read_b64 {r2(vO+2*w)}, v4 offset:{w*512}")
    e("s_waitcnt lgkmcnt(15)")
    e("v_mov_b32 v62, v60")
    e("s_nop 1")
    for sh in (8, 4, 2, 1):
        e(f"v_max_f32_dpp v62, v62, v62 row_ror:{sh} row_mask:0xf bank_mask:0xf")
        e("s_nop 1")
    e("v_sub_f32 v63, v60, v62")
    e("v_exp_f32 v63, v63                   ; f_w")
    e("s_nop 0")
    e("v_mul_f32 v64, v63, v61")
    e("s_nop 1")
    for sh in (8, 4, 2, 1):
        e(f"v_add_f32_dpp v64, v64, v64 row_ror:{sh} row_mask:0xf bank_mask:0xf")
        e("s_nop 1")
    e("v_mov_b32 v68, 0")
    e("v_mov_b32 v69, 0")
    e("v_mov_b32 v70, v62")
    e("v_mov_b32 v71, v64")
    e("s_waitcnt lgkmcnt(0)")
    for w in range(16):
        e(f"v_fmac_f32_dpp v68, v63, v{vO+2*w} row_newbcast:{w} row_mask:0xf bank_mask:0xf")
        e(f"v_fmac_f32_dpp v69, v63, v{vO+2*w+1} row_newbcast:{w} row_mask:0xf bank_mask:0xf")
    e("v_lshlrev_b32 v4, 4, v1              ; lane*16")
    e("s_lshl_b32 s38, s2, 10")
    e("v_add_u32 v5, s38, v4")
    e("global_store_dwordx4 v5, v[68:71], s[20:21] sc1")
    e("s_lshl_b32 s39, s3, 2                ; head*4")
    e("s_add_u32 s39, s39, 128")
    e("v_mov_b32 v6, s39")
    e("v_mov_b32 v7, 1")
    e("s_waitcnt vmcnt(0)")
    stamp(6)
    e("s_mov_b64 exec, 1")
    e("global_atomic_add v8, v6, v7, s[18:19] sc0")
    e("s_waitcnt vmcnt(0)")
    e("v_readfirstlane_b32 s38, v8")
    e("s_mov_b64 exec, -1")
    stamp(7)
    e("s_cmp_lg_u32 s38, 7")
    e("s_cbranch_scc1 L_dump")
    e("s_lshl_b32 s38, s3, 13               ; head*8*1024")
    e("v_add_u32 v5, s38, v4")
    e("v_add_u32 v6, 4096, v5")
    for s in range(8):
        e(f"global_load_dwordx4 {r4(28+4*s)}, v{5 if s < 4 else 6}, s[20:21] offset:{(s%4)*1024} sc1")
    e("s_lshl_b32 s38, s3, 8")
    e("v_lshlrev_b32 v7, 2, v1")
    e("v_add_u32 v7, s38, v7")
    e("s_waitcnt vmcnt(0)")
    Ms = [28 + 4 * s + 2 for s in range(8)]
    e(f"v_max3_f32 v60, v{Ms[0]}, v{Ms[1]}, v{Ms[2]}")
    e(f"v_max3_f32 v60, v60, v{Ms[3]}, v{Ms[4]}")
    e(f"v_max3_f32 v60, v60, v{Ms[5]}, v{Ms[6]}")
    e(f"v_max_f32 v60, v60, v{Ms[7]}")
    for s in range(8):
        e(f"v_sub_f32 v{Ms[s]}, v{Ms[s]}, v60")
    for s in range(8):
        e(f"v_exp_f32 v{Ms[s]}, v{Ms[s]}")
    e("s_nop 0")
    e(f"v_mul_f32 v61, v{Ms[0]}, v{28}")
    e(f"v_mul_f32 v62, v{Ms[0]}, v{29}")
    e(f"v_mul_f32 v63, v{Ms[0]}, v{31}")
    for s in range(1, 8):
        e(f"v_fmac_f32 v61, v{Ms[s]}, v{28+4*s}")
        e(f"v_fmac_f32 v62, v{Ms[s]}, v{28+4*s+1}")
        e(f"v_fmac_f32 v63, v{Ms[s]}, v{28+4*s+3}")
    e("v_rcp_f32 v63, v63")
    e("s_nop 0")
    e("v_mul_f32 v61, v61, v63")
    e("v_mul_f32 v62, v62, v63")
    e("v_cvt_pk_bf16_f32 v61, v61, v62")
    e("global_store_dword v7, v61, s[16:17]")
    if stamps:
        e("s_waitcnt vmcnt(0)")
    stamp(8)
    lab("L_dump")
    dump_stamps(9, "x")
    lab("L_end")
    e("s_endpgm")
    o.append('.section .rodata,"a"')
    o.append(".p2align 6")
    o.append(f".amdhsa_kernel {NAME}_kernel")
    o.append("  .amdhsa_next_free_vgpr 128")
    o.append("  .amdhsa_next_free_sgpr 72")
    o.append("  .amdhsa_accum_offset 128")
    o.append("  .amdhsa_group_segment_fixed_size 0")
    o.append("  .amdhsa_kernarg_size 72")
    o.append("  .amdhsa_user_sgpr_count 2")
    o.append("  .amdhsa_user_sgpr_kernarg_segment_ptr 1")
    o.append("  .amdhsa_system_sgpr_workgroup_id_x 1")
    o.append(".end_amdhsa_kernel")
    return "\n".join(o) + "\n"

if __name__ == "__main__":
    out = sys.argv[1]
    flag = sys.argv[2] if len(sys.argv) > 2 else "nt"
    open(out, "w").write(gen(flag if flag != "none" else "", stamps=(sys.argv[3] if len(sys.argv) > 3 and sys.argv[3] != "0" else False), remap=(int(sys.argv[4]) if len(sys.argv) > 4 else 0)))
```
